```python
import torch

def _softmax(x, axis=-1):
    return torch.softmax(x, dim=axis)
def _gelu(x):
    return torch.nn.functional.gelu(x, approximate="tanh")
def _silu(x):
    return torch.nn.functional.silu(x)
def _sigmoid(x):
    return torch.sigmoid(x)
def _layernorm(x, axis=-1, eps=1e-5):
    m = x.mean(dim=axis, keepdim=True)
    v = x.var(dim=axis, keepdim=True, unbiased=False)
    return (x - m) / torch.sqrt(v + eps)
def _scatter_add(tgt, idx, src, axis=0):
    return tgt.clone().index_add_(axis, idx, src)
def _segment_sum(src, seg, n):
    out = torch.zeros((n,) + src.shape[1:], dtype=src.dtype)
    return out.index_add_(0, seg, src)
def _pad(x, pw):
    flat = tuple(v for pair in reversed(pw) for v in pair)
    return torch.nn.functional.pad(x, flat)

kernel_name = 'gated_mix__sliding_block_cached__glu_gated_swiglu__decode'

def setup_inputs():

    _w = (lambda a: (lambda t: t.to(torch.bfloat16) if t.is_floating_point() else t)(torch.as_tensor(a)))
    def _A_setup():
        B, Sq, D = 8, 1, 640
        Hq, Hkv, Sk, Dh = 32, 32, 4096, 128
        assert Hq % Hkv == 0, (Hq, Hkv)
        return {
            "x": _w((lambda *s: torch.randn(*s, dtype=torch.bfloat16) * 0.05)(B, Sq, D)),
            "k_cache": _w((lambda *s: torch.randn(*s, dtype=torch.bfloat16) * 6.4)(B, Hkv, Sk, Dh)),
            "v_cache": _w((lambda *s: torch.randn(*s, dtype=torch.bfloat16) * 0.05)(B, Hkv, Sk, Dh)),
            "wq": _w((lambda *s: torch.randn(*s, dtype=torch.bfloat16) * 6.4)(D, Hq * Dh) * (D ** -0.5)),
            "wo": _w((lambda *s: torch.randn(*s, dtype=torch.bfloat16) * 0.05)(Hq * Dh, D) * ((Hq * Dh) ** -0.5)),
        }
    _A_in = _A_setup()

    def _B_setup():
        B, S, D, F = 8, 1, 640, 1728
        return {
            "x": _w((lambda *s: torch.randn(*s, dtype=torch.bfloat16) * 0.05)(B, S, D)),
            "w1": _w((lambda *s: torch.randn(*s, dtype=torch.bfloat16) * 0.4)(D, F) * (2.0 / D) ** 0.5),
            "w3": _w((lambda *s: torch.randn(*s, dtype=torch.bfloat16) * 0.4)(D, F) * (2.0 / D) ** 0.5),
            "w2": _w((lambda *s: torch.randn(*s, dtype=torch.bfloat16) * 0.4)(F, D) * (2.0 / F) ** 0.5),
        }
    _B_in = _B_setup()

    return {
        "A_x": _A_in["x"],
        "A_k_cache": _A_in["k_cache"],
        "A_v_cache": _A_in["v_cache"],
        "A_wq": _A_in["wq"],
        "A_wo": _A_in["wo"],
        "B_x": _B_in["x"],
        "B_w1": _B_in["w1"],
        "B_w3": _B_in["w3"],
        "B_w2": _B_in["w2"],
        "gate_w": _w((lambda *s: torch.randn(*s, dtype=torch.bfloat16) * 0.05)(640) * 16.0),
    }

def reference(A_x, A_k_cache, A_v_cache, A_wq, A_wo, B_x, B_w1, B_w3, B_w2, gate_w):
    def _A_ref(x, k_cache, v_cache, wq, wo):
        B, Sq, D = x.shape
        Hq, Dh = 32, 128
        Hkv, Sk = k_cache.shape[1], k_cache.shape[2]
        W = min(4096, max(256, Sk // 4))
        rep = Hq // Hkv
        q = (lambda x, *d: x.permute(*d))((x @ wq).reshape(B, Sq, Hq, Dh), 0, 2, 1, 3)
        k = (lambda x, n, axis: torch.repeat_interleave(x, n, dim=axis))(k_cache[:, :, Sk - W:, :], rep, axis=1)
        v = (lambda x, n, axis: torch.repeat_interleave(x, n, dim=axis))(v_cache[:, :, Sk - W:, :], rep, axis=1)
        scores = torch.einsum("bhqd,bhkd->bhqk", q, k) * (Dh ** -0.5)
        p = _softmax(scores, axis=-1)
        o = torch.einsum("bhqk,bhkd->bhqd", p, v)
        return (lambda x, *d: x.permute(*d))(o, 0, 2, 1, 3).reshape(B, Sq, Hq * Dh) @ wo

    def _B_ref(x, w1, w3, w2):
        gate = torch.einsum("bsd,df->bsf", x, w1)
        up = torch.einsum("bsd,df->bsf", x, w3)
        h = _silu(gate) * up
        out = torch.einsum("bsf,fd->bsd", h, w2)
        return out

    x = A_x
    g = _sigmoid((x * gate_w).sum(-1, keepdims=True))
    a = _A_ref(x, A_k_cache, A_v_cache, A_wq, A_wo)
    b = _B_ref(x, B_w1, B_w3, B_w2)
    return g * a + (1 - g) * b
```

```python
NAME = "gated_mix__sliding_block_cached__glu_gated_swiglu__decode"
HDR = """; Kernarg: 0 x | 8 kc | 16 vc | 24 wq | 32 wo | 40 Bx | 48 w1 | 56 w3 | 64 w2 | 72 gate_w | 80 out | 88 dbg | 96 ws
"""
def kd(name, vgpr, sgpr=102, accum=None):
    if accum is None:
        accum = min(256, (vgpr + 3) // 4 * 4)
    return f""".section .rodata,"a"
.p2align 6
.amdhsa_kernel {name}
  .amdhsa_next_free_vgpr {vgpr}
  .amdhsa_next_free_sgpr {sgpr}
  .amdhsa_accum_offset {accum}
  .amdhsa_group_segment_fixed_size 0
  .amdhsa_kernarg_size 104
  .amdhsa_user_sgpr_count 2
  .amdhsa_user_sgpr_kernarg_segment_ptr 1
  .amdhsa_system_sgpr_workgroup_id_x 1
  .amdhsa_float_denorm_mode_32 3
.end_amdhsa_kernel
"""
def head(name):
    return f""".text
.globl {name}
.p2align 8
.type {name},@function
{name}:
"""
```

```python
import re, sys
def regs(tok):
    tok = tok.strip()
    m = re.fullmatch(r"-?\|?(?:abs\()?([vsa])(\d+)\)?\|?", tok)
    if m: return [(m.group(1), int(m.group(2)))]
    m = re.fullmatch(r"-?([vsa])\[(\d+):(\d+)\]", tok)
    if m: return [(m.group(1), i) for i in range(int(m.group(2)), int(m.group(3)) + 1)]
    if tok == "vcc": return [("s", 106), ("s", 107)]
    if tok == "exec": return [("s", 126), ("s", 127)]
    if tok == "m0": return [("s", 124)]
    return []
TRANS = ("v_exp_f32", "v_log_f32", "v_rcp_f32", "v_rsq_f32", "v_sqrt_f32", "v_sin_f32", "v_cos_f32")
def lint(text):
    pos = 0
    lastw = {}
    lastc = {}
    laststore = {}
    errs = []
    for ln, line in enumerate(text.split("\n"), 1):
        s = line.split(";")[0].strip()
        if not s or s.startswith(".") or s.endswith(":"): continue
        parts = s.split(None, 1)
        op = parts[0]; rest = parts[1] if len(parts) > 1 else ""
        if op == "s_nop":
            pos += int(rest, 0) + 1; continue
        toks = [t.strip() for t in rest.split(",")]
        mods = ""
        if toks:
            lt = toks[-1].split(None, 1)
        m = re.search(r"\s(quad_perm|row_|offset|offen|sc0|sc1|nt|op_sel|bank_mask|row_mask|lds|glc|off\b)", " " + rest)
        opstr = rest
        mm = re.search(r"\s+(quad_perm:|row_\w+:|offset\d?:|offen|sc0|sc1|nt\b|op_sel|bank_mask|lds\b|glc)", rest)
        if mm: opstr = rest[:mm.start()]; mods = rest[mm.start():]
        toks = [t.strip() for t in opstr.split(",")] if opstr else []
        isv = op.startswith("v_"); ismf = op.startswith("v_mfma") or op.startswith("v_smfmac")
        isdpp = "_dpp" in op or "quad_perm" in mods or "row_" in mods
        isperm = op.startswith("v_permlane"); isrl = op.startswith("v_readlane") or op.startswith("v_readfirstlane")
        isvm = op.startswith(("buffer_", "global_", "flat_")); isds = op.startswith("ds_")
        dst = []; src = []
        if isv:
            if op.startswith("v_cmp"):
                dst = regs(toks[0]); src = sum((regs(t) for t in toks[1:]), [])
                if op.startswith("v_cmpx"): dst += regs("exec")
            elif isperm:
                dst = regs(toks[0]) + regs(toks[1]); src = list(dst)
            else:
                dst = regs(toks[0]); src = sum((regs(t) for t in toks[1:]), [])
                if "_co_" in op: dst += regs(toks[1])
                if op.startswith(("v_fmac", "v_dot2c")) or isdpp: src += regs(toks[0])
                if op.startswith("v_cndmask") and len(toks) == 3: src += regs("vcc")
        elif isvm:
            if "load" in op and "lds" not in mods:
                dst = regs(toks[0]); src = sum((regs(t) for t in toks[1:]), [])
            else:
                src = sum((regs(t) for t in toks), [])
        elif isds:
            if "read" in op or "permute" in op or "swizzle" in op:
                dst = regs(toks[0]); src = sum((regs(t) for t in toks[1:]), [])
            else:
                src = sum((regs(t) for t in toks), [])
        elif op.startswith("s_"):
            if op.startswith(("s_cmp", "s_cbranch", "s_branch", "s_waitcnt", "s_barrier", "s_endpgm", "s_setprio", "s_sleep", "s_bitcmp")):
                src = sum((regs(t) for t in toks), [])
            else:
                dst = regs(toks[0]) if toks else []; src = sum((regs(t) for t in toks[1:]), [])
                if "saveexec" in op: dst += regs("exec")
        def need(r, n, why):
            p, k = lastw[r]
            d = pos - p - 1
            if d < n: errs.append((ln, n - d, f"line {ln}: {s}   [{why}: {r[0]}{r[1]} dist {d} < {n}]"))
        srcC = regs(toks[3]) if ismf and len(toks) > 3 else []
        for r in src:
            if r not in lastw: continue
            p, k = lastw[r]
            if r[0] in "va":
                if k in ("valu", "trans"):
                    if ismf: need(r, 2, "valu->mfma")
                    if isdpp and toks[1:] and r in regs(toks[1]): need(r, 2, "valu->dpp")
                    if isperm: need(r, 2, "valu->permlane")
                    if isrl: need(r, 1, "valu->readlane")
                    if k == "trans" and isv and op not in TRANS: need(r, 1, "trans->valu")
                if k == "mfma":
                    if ismf:
                        if r in srcC:
                            if regs(toks[0]) != srcC and False: pass
                        else: need(r, 8, "mfma->mfma A/B")
                    else: need(r, 8, "mfma->read")
            else:
                if k == "valu_s":
                    if isvm: need(r, 5, "valu sgpr->vmem")
                    elif isv and not isrl: need(r, 2, "valu sgpr->valu")
                    elif isrl: need(r, 4, "valu sgpr->lane sel")
                if k == "salu" and r == ("s", 124) and (isvm and "lds" in mods): need(r, 1, "m0")
        if (isv and not ismf) or isvm or isds:
            for r in dst:
                if r in lastw and lastw[r][1] == "mfma": need(r, 8, "mfma->write WAW")
                if isv and r in lastc and pos - lastc[r] - 1 < 3: errs.append((ln, 3 - (pos - lastc[r] - 1), f"line {ln}: {s}   [mfma srcC WAR {r}]"))
                if r in laststore and pos - laststore[r] - 1 < (2 if isv else 1): errs.append((ln, (2 if isv else 1) - (pos - laststore[r] - 1), f"line {ln}: {s}   [wide store WAR {r}]"))
        ex = ("s", 126)
        if ex in lastw and lastw[ex][1] == "valu_s":
            if isdpp and pos - lastw[ex][0] - 1 < 5: errs.append((ln, 5 - (pos - lastw[ex][0] - 1), f"line {ln}: {s} [valu exec->dpp]"))
            if (ismf or isperm or isrl) and pos - lastw[ex][0] - 1 < 4: errs.append((ln, 4 - (pos - lastw[ex][0] - 1), f"line {ln}: {s} [valu exec->mfma/perm]"))
        for r in dst:
            if r[0] in "va":
                lastw[r] = (pos, "mfma" if ismf else ("trans" if op in TRANS or op.replace("_e32", "").replace("_e64", "") in TRANS else ("valu" if isv else "mem")))
            else:
                lastw[r] = (pos, "valu_s" if isv else "salu")
        for r in srcC: lastc[r] = pos
        if (isvm and "store" in op and ("x4" in op or "x3" in op)):
            data = toks[0] if op.startswith("buffer_") else toks[1]
            for r in regs(data): laststore[r] = pos
        pos += 1
    return errs
def fix(text):
    n = 0
    while True:
        e = lint(text)
        if not e: return text, n
        ln = e[0][0]
        k = max(x[1] for x in e if x[0] == ln)
        lines = text.split("\n")
        lines.insert(ln - 1, f"s_nop {k-1}")
        text = "\n".join(lines); n += 1
if __name__ == "__main__":
    e = lint(open(sys.argv[1]).read())
    print("\n".join(x[2] for x in e) if e else "lint clean")
```

```python
import sys
from gen_common import *
import lint

HOP1Q = 4096
HOP1F = HOP1Q + 512 * 1024
HOP2 = HOP1F + 512 * 1024
PITCH = 160
L_TQ = 0; L_TF = 25600
L_Q = 51200; L_H = 51456; L_G = 51712; L_ST = 51744
L_O = 52224; L_B = 54272; L_R2 = 59392; L_END = 69632
SCALE = 0x3DB504F3
LOG2E = 0x3FB8AA3B

def gen(stamps=False, DS=6, NB1=44, DA=4, DA2=3, WO_PRE=20, KPER=8, VPER=6, STATU=40, prio=True):
    NS = 50
    o = []
    def A(x):
        for l in x.split("\n"): o.append(l)
    nst = [0]
    def stamp(i):
        if stamps: A(f"s_memrealtime s[{70+2*i}:{71+2*i}]")
    A(HDR.rstrip("\n"))
    A(f"; @launch grid=(256,1,1) block=(512,1,1) lds={L_END}")
    A('.amdgcn_target "amdgcn-amd-amdhsa--gfx950"')
    A(head(NAME + "_kernel").rstrip("\n"))
    A("s_cmp_ge_u32 s2, 256\ns_cbranch_scc1 L_end")
    A("s_load_dwordx16 s[4:19], s[0:1], 0")
    A("s_load_dwordx8 s[20:27], s[0:1], 64")
    A("s_load_dwordx2 s[28:29], s[0:1], 96")
    if stamps:
        for i in range(11): A(f"s_mov_b64 s[{70+2*i}:{71+2*i}], 0")
    stamp(0)
    A("v_lshrrev_b32 v1, 6, v0\nv_and_b32 v0, 63, v0\nv_readfirstlane_b32 s3, v1")
    A("s_lshr_b32 s30, s2, 5\ns_and_b32 s31, s2, 31")
    A("s_cmp_ge_u32 s3, 4\ns_cbranch_scc1 L_aux")

    def spin_back(label, limit):
        A(f"s_cbranch_vccz {label}_ok\ns_add_u32 s98, s98, 1\ns_cmp_lt_u32 s98, {limit}\ns_cbranch_scc1 {label}\n{label}_ok:")

    def masks():
        A("v_and_b32 v3, 1, v0\nv_lshlrev_b32 v3, 4, v3\nv_mov_b32 v48, 0xffff\nv_lshlrev_b32 v48, v3, v48")
        A("v_bfe_u32 v3, v0, 1, 3")
        for m in range(4):
            A(f"v_cmp_eq_u32 vcc, {m}, v3\nv_cndmask_b32 v{4+m}, 0, v48, vcc")

    def abuild(dst, preg, n):
        for m in range(4):
            A(f"v_and_b32_dpp v{dst+m}, v{preg}, v{4+m} row_newbcast:{n} row_mask:0xf bank_mask:0xf")

    def xlane(op, r, t):
        for n in (1, 2, 4, 8):
            A(f"{op}_dpp v{r}, v{r}, v{r} row_ror:{n} row_mask:0xf bank_mask:0xf")
        A(f"v_mov_b32 v{t}, v{r}\nv_permlane16_swap_b32 v{r}, v{t}\n{op} v{r}, v{r}, v{t}")
        A(f"v_mov_b32 v{t}, v{r}\nv_permlane32_swap_b32 v{r}, v{t}\n{op} v{r}, v{r}, v{t}")

    def dump_stamps():
        if not stamps: return
        A("s_getreg_b32 s92, hwreg(HW_REG_XCC_ID)\ns_mov_b32 s93, 0")
        A("s_waitcnt lgkmcnt(0)")
        A("s_lshl_b32 s94, s2, 3\ns_add_u32 s94, s94, s3\ns_mul_i32 s94, s94, 96\ns_add_u32 s94, s94, 0x20000000")
        A("s_add_u32 s96, s28, s94\ns_addc_u32 s97, s29, 0\ns_mov_b64 exec, 1\nv_mov_b32 v3, 0")
        for q in range(6):
            for k in range(4): A(f"v_mov_b32 v{48+k}, s{70+4*q+k}")
            A(f"global_store_dwordx4 v3, v[48:51], s[96:97] offset:{16*q}\ns_nop 1")

    SL = 56
    slot = lambda i: SL + 4 * (i % NS)
    A("v_and_b32 v3, 3, v0\nv_lshlrev_b32 v1, 4, v3\nv_bfe_u32 v3, v0, 2, 2\nv_lshl_add_u32 v1, v3, 8, v1\nv_lshrrev_b32 v3, 4, v0\nv_lshl_add_u32 v1, v3, 6, v1")
    A("v_lshlrev_b32 v2, 4, v0")
    A("s_lshl_b32 s56, s2, 20\ns_lshl_b32 s57, s3, 16\ns_add_u32 s56, s56, s57\ns_add_u32 s56, s56, 0xC0000")
    A("s_lshr_b32 s40, s2, 3\ns_and_b32 s40, s40, 15\ns_lshl_b32 s40, s40, 12")
    A("s_mov_b32 s34, 0x10000\ns_mov_b32 s35, 0x20000\ns_mov_b32 s38, 0x10000\ns_mov_b32 s39, 0x20000")
    A("s_waitcnt lgkmcnt(0)")
    A("s_add_u32 s32, s6, s56\ns_addc_u32 s33, s7, 0\ns_add_u32 s36, s8, s56\ns_addc_u32 s37, s9, 0")
    def issue(n):
        r = slot(n)
        g = (n % 64) // 4
        if n < 64 and n % 4 == 0 and g > 0:
            A(f"s_add_u32 s{40+g}, s{39+g}, 0x1000\ns_and_b32 s{40+g}, s{40+g}, 0xffff")
        if n < 64:
            A(f"buffer_load_dwordx4 v[{r}:{r+3}], v1, s[32:35], s{40+g} offen offset:{(n%4)*1024} nt")
        else:
            A(f"buffer_load_dwordx4 v[{r}:{r+3}], v2, s[36:39], s{40+g} offen offset:{(n%4)*1024} nt")
    for n in range(NB1):
        if n >= DS: A(f"s_waitcnt vmcnt({DS-1})")
        issue(n)
        if n == DS - 1:
            masks()
            A(f"v_lshrrev_b32 v49, 2, v0\nv_lshlrev_b32 v49, 4, v49\nv_add_u32 v49, {L_Q}, v49")
            A("v_and_b32 v50, 3, v0")
    stamp(1)
    A("s_barrier")
    stamp(2)
    A("ds_read_b128 v[52:55], v49\ns_waitcnt lgkmcnt(0)")
    for t in range(4):
        A(f"v_cmp_eq_u32 vcc, {t}, v50")
        for k in range(4): A(f"v_cndmask_b32 v{12+4*t+k}, 0, v{52+k}, vcc")
    def kreduce(g):
        acc = 28 + 4 * (g & 1); Q = g & 3; T = 8 + (g >> 2)
        for r in range(4):
            n = (4 * (Q - r)) % 16
            ctl = f"row_ror:{n}" if n else "quad_perm:[0,1,2,3]"
            if r == 0: A(f"v_mov_b32_dpp v{T}, v{acc} {ctl} row_mask:0xf bank_mask:{1<<Q}")
            else: A(f"v_add_f32_dpp v{T}, v{acc+r}, v{T} {ctl} row_mask:0xf bank_mask:{1<<Q}")
    def kgroup(g):
        acc = 28 + 4 * (g & 1)
        for t in range(4):
            r = slot(4 * g + t)
            c = "0" if t == 0 else f"v[{acc}:{acc+3}]"
            A(f"v_mfma_f32_16x16x32_bf16 v[{acc}:{acc+3}], v[{r}:{r+3}], v[{12+4*t}:{15+4*t}], {c}")
        if g > 0: kreduce(g - 1)
    def softmax():
        kreduce(15)
        A(f"s_mov_b32 s58, {SCALE}\ns_mov_b32 s59, {LOG2E}")
        for rnd in range(2):
            A("v_cvt_pk_bf16_f32 v48, v8, v9\nv_cvt_pk_bf16_f32 v49, v10, v11")
            A("v_lshlrev_b32 v8, 16, v48\nv_and_b32 v9, 0xffff0000, v48\nv_lshlrev_b32 v10, 16, v49\nv_and_b32 v11, 0xffff0000, v49")
            if rnd == 0:
                for k in range(4): A(f"v_mul_f32 v{8+k}, s58, v{8+k}")
        A("v_max3_f32 v50, v8, v9, v10\nv_max_f32 v50, v50, v11")
        xlane("v_max_f32", 50, 48)
        for k in range(4): A(f"v_sub_f32 v{8+k}, v{8+k}, v50")
        for k in range(4): A(f"v_mul_f32 v{8+k}, s59, v{8+k}")
        for k in range(4): A(f"v_exp_f32 v{8+k}, v{8+k}")
        A("v_add_f32 v51, v8, v9\nv_add_f32 v48, v10, v11\nv_add_f32 v51, v51, v48")
        for k in range(4): A(f"v_cvt_pk_bf16_f32 v{8+k}, v{8+k}, v{8+k}")
        xlane("v_add_f32", 51, 48)
        A(f"s_lshl_b32 s60, s3, 3\ns_add_u32 s60, s60, {L_ST}\nv_mov_b32 v48, s60\nds_write_b64 v48, v[50:51]")
        abuild(40, 8, 0)
    def stats():
        A(f"v_mov_b32 v48, {L_ST}")
        A("s_mov_b32 s98, 0\nL_stat:")
        A("ds_read_b128 v[12:15], v48\nds_read_b128 v[16:19], v48 offset:16\ns_waitcnt lgkmcnt(0)")
        A("v_min_u32 v20, v13, v15\nv_min3_u32 v20, v20, v17, v19\nv_cmp_eq_u32 vcc, 0, v20\ns_nop 4")
        spin_back("L_stat", 1 << 20)
        A("v_max3_f32 v20, v12, v14, v16\nv_max_f32 v20, v20, v18")
        for r in (12, 14, 16, 18, 50): A(f"v_sub_f32 v{r}, v{r}, v20")
        for r in (12, 14, 16, 18, 50): A(f"v_mul_f32 v{r}, s59, v{r}")
        for r in (12, 14, 16, 18, 50): A(f"v_exp_f32 v{r}, v{r}")
        A("v_mul_f32 v21, v12, v13\nv_fmac_f32 v21, v14, v15\nv_fmac_f32 v21, v16, v17\nv_fmac_f32 v21, v18, v19")
        A("v_rcp_f32 v21, v21\nv_mul_f32 v50, v50, v21")
        A(f"v_and_b32 v49, 15, v0\nv_lshlrev_b32 v49, 5, v49\nv_lshrrev_b32 v48, 4, v0\nv_lshl_add_u32 v49, v48, 4, v49")
        A(f"s_lshl_b32 s60, s3, 9\ns_add_u32 s60, s60, {L_O}\nv_add_u32 v49, s60, v49")
    def vload(u):
        r = slot(64 + u); a = 40 + 4 * (u & 1)
        c = "0" if u == 0 else "v[36:39]"
        A(f"v_mfma_f32_16x16x32_bf16 v[36:39], v[{a}:{a+3}], v[{r}:{r+3}], {c}")
        if u + 1 < 64: abuild(40 + 4 * ((u + 1) & 1), 8 + ((u + 1) >> 4), (u + 1) & 15)
        if u == STATU: stats()
    n = NB1; c = 0; landed = NB1 - 1 - DS
    while c < 128:
        if n < 128 and n - NS < c:
            A(f"s_waitcnt vmcnt({DS-1})"); landed = n - DS
            issue(n); n += 1
        else:
            tgt = c + 3 if c < 64 else c
            if tgt > landed:
                A(f"s_waitcnt vmcnt({n - 1 - tgt})"); landed = tgt
        budget = 1.0
        while c < 128 and budget > 0:
            if c < 64:
                if c + 3 > landed: break
                kgroup(c // 4); c += 4; budget -= 4.0 / KPER
                if c == 64:
                    stamp(3); softmax(); budget = 0
            else:
                if c > landed: break
                vload(c - 64); c += 1; budget -= 1.0 / VPER
    stamp(4)
    for k in range(4): A(f"v_mul_f32 v{36+k}, v{36+k}, v50")
    A("s_mov_b32 exec_hi, 0\nds_write_b128 v49, v[36:39]\ns_waitcnt lgkmcnt(0)\ns_barrier")
    stamp(5)
    stamp(10)
    dump_stamps()
    A("s_endpgm")

    A("L_aux:")
    if prio: A("s_setprio 2")
    A("s_sub_u32 s57, s3, 4")
    A("s_cmp_ge_u32 s3, 6\ns_cbranch_scc1 L_aux67")
    A("s_and_b32 s58, s30, 3\ns_lshr_b32 s59, s30, 2")
    A("v_lshrrev_b32 v3, 3, v0\nv_and_b32 v9, 7, v0")
    A("v_mul_u32_u24 v2, 1280, v9\nv_lshrrev_b32 v10, 4, v0\nv_lshl_add_u32 v2, v10, 4, v2")
    A("s_mul_i32 s60, s58, 320")
    A("s_mov_b32 s38, 10240\ns_mov_b32 s39, 0x20000\ns_mov_b32 s35, 0x20000")
    A("s_waitcnt lgkmcnt(0)")
    A("s_load_dword s56, s[28:29], 0")
    A("s_mov_b32 s36, s4\ns_mov_b32 s37, s5")
    A("s_cmp_eq_u32 s3, 5\ns_cbranch_scc1 L_pa5")
    A("s_mov_b32 s61, 8192\ns_lshl_b32 s62, s31, 8\ns_lshl_b32 s63, s59, 7\ns_add_u32 s62, s62, s63")
    A(f"s_mov_b32 s32, s10\ns_mov_b32 s33, s11\ns_mov_b32 s64, {HOP1Q}\ns_mov_b32 s65, {L_TQ}\ns_branch L_pa")
    A("L_pa5:")
    A("s_cmp_ge_u32 s31, 27\ns_cbranch_scc1 L_pa_done")
    A("s_mov_b32 s61, 3456\ns_lshl_b32 s62, s31, 7")
    A("s_cmp_eq_u32 s59, 0\ns_cselect_b32 s32, s16, s18\ns_cselect_b32 s33, s17, s19")
    A(f"s_mov_b32 s64, {HOP1F}\ns_mov_b32 s65, {L_TF}")
    A("L_pa:")
    XF = 216
    for s in range(5):
        A(f"buffer_load_dwordx4 v[{XF+4*s}:{XF+4*s+3}], v2, s[36:39], s60 offen offset:{64*s}")
    A("s_mul_i32 s63, s61, 160\ns_mul_i32 s63, s63, s58\ns_add_u32 s62, s62, s63")
    A("s_add_u32 s32, s32, s62\ns_addc_u32 s33, s33, 0\ns_mul_i32 s34, s61, 159\ns_add_u32 s34, s34, 128")
    A("v_mul_u32_u24 v1, s61, v3\nv_lshl_add_u32 v1, v9, 4, v1")
    A("s_lshl_b32 s61, s61, 3\ns_mov_b32 s63, 0")
    for i in range(20):
        A(f"buffer_load_dwordx4 v[{56+4*i}:{59+4*i}], v1, s[32:35], s63 offen nt")
        if i < 19: A("s_add_u32 s63, s63, s61")
    A(f"v_mul_u32_u24 v11, {PITCH}, v3\nv_lshl_add_u32 v11, v9, 4, v11\nv_add_u32 v11, s65, v11")
    A(f"v_bfe_u32 v12, v0, 2, 2\nv_lshl_add_u32 v12, v10, 3, v12\nv_mul_u32_u24 v12, {PITCH}, v12\nv_and_b32 v13, 3, v0\nv_lshl_add_u32 v12, v13, 3, v12\nv_add_u32 v12, s65, v12")
    A("v_lshlrev_b32 v13, 11, v9\nv_lshl_add_u32 v13, v10, 4, v13")
    A("s_lshl_b32 s62, s31, 14\ns_add_u32 s64, s64, s62")
    A("s_lshl_b32 s62, s59, 10\ns_lshl_b32 s63, s58, 8\ns_add_u32 s62, s62, s63\ns_add_u32 s62, s62, s64")
    A("s_add_u32 s66, s28, s62\ns_addc_u32 s67, s29, 0")
    A("s_lshl_b32 s62, s30, 11\ns_add_u32 s62, s62, s64\ns_add_u32 s68, s28, s62\ns_addc_u32 s69, s29, 0")
    A("s_waitcnt lgkmcnt(0)\ns_add_u32 s56, s56, 0x01010101\nv_mov_b32 v14, s56")
    for r in range(4): A(f"s_mov_b32 s{40+r}, {0x07060500 + r}")
    A("s_mov_b32 s44, 0x0c0c0400\ns_mov_b32 s45, 0x04000c0c")
    FR = 136
    for s in range(5):
        for i in range(4 * s, 4 * s + 4):
            A(f"s_waitcnt vmcnt({19-i})\nds_write_b128 v11, v[{56+4*i}:{59+4*i}] offset:{i*8*PITCH}")
        for ct in range(4):
            f = FR + 16 * s + 4 * ct
            A(f"ds_read_b64_tr_b16 v[{f}:{f+1}], v12 offset:{s*32*PITCH + ct*32}")
            A(f"ds_read_b64_tr_b16 v[{f+2}:{f+3}], v12 offset:{s*32*PITCH + ct*32 + 4*PITCH}")
        A("s_waitcnt lgkmcnt(0)")
        for ct in range(4):
            f = FR + 16 * s + 4 * ct; acc = 16 + 4 * ct
            c = "0" if s == 0 else f"v[{acc}:{acc+3}]"
            A(f"v_mfma_f32_16x16x32_bf16 v[{acc}:{acc+3}], v[{f}:{f+3}], v[{XF+4*s}:{XF+4*s+3}], {c}")
    stamp(1)
    A("s_mov_b32 s46, 0x00ff00ff\ns_mov_b32 s47, 0x00ff00ff")
    for ct in range(4):
        for r in range(4): A(f"v_perm_b32 v{16+4*ct+r}, v{16+4*ct+r}, v14, s{40+r}")
    A("s_mov_b64 exec, s[46:47]")
    for ct in range(4):
        A(f"global_store_dwordx4 v13, v[{16+4*ct}:{19+4*ct}], s[66:67] offset:{64*ct} sc1")
    A("s_mov_b64 exec, -1\nv_lshlrev_b32 v15, 4, v0")
    def tagcheck(regs, first):
        for i, r in enumerate(regs):
            A(f"v_perm_b32 v48, v{r+1}, v{r}, s44\nv_perm_b32 v49, v{r+3}, v{r+2}, s45\nv_or_b32 v48, v48, v49")
            if i == 0: A("v_xor_b32 v50, v48, v14")
            else: A("v_xor_b32 v48, v48, v14\nv_or_b32 v50, v50, v48")
        A("v_cmp_ne_u32 vcc, 0, v50\ns_nop 4")
    A("s_mov_b32 s98, 0\nL_poll1:")
    A("global_load_dwordx4 v[40:43], v15, s[68:69] sc1\nglobal_load_dwordx4 v[44:47], v15, s[68:69] offset:1024 sc1\ns_waitcnt vmcnt(0)")
    tagcheck([40, 44], True)
    spin_back("L_poll1", 1 << 16)
    stamp(2)
    for r in range(40, 48): A(f"v_and_b32 v{r}, 0xffffff00, v{r}")
    def treduce(r):
        A(f"v_permlane16_swap_b32 v{r}, v{r+1}\nv_permlane16_swap_b32 v{r+2}, v{r+3}")
        A(f"v_add_f32 v{r}, v{r}, v{r+1}\nv_add_f32 v{r+2}, v{r+2}, v{r+3}")
        A(f"v_permlane32_swap_b32 v{r}, v{r+2}\nv_add_f32 v{r}, v{r}, v{r+2}")
    treduce(40); treduce(44)
    A("v_cvt_pk_bf16_f32 v40, v40, v44")
    A("s_cmp_eq_u32 s3, 5\ns_cbranch_scc1 L_ffn")
    A(f"v_and_b32 v48, 15, v0\nv_lshlrev_b32 v48, 3, v48\nv_lshl_add_u32 v48, v10, 1, v48\nv_add_u32 v48, {L_Q}, v48")
    A("ds_write_b16 v48, v40\nds_write_b16_d16_hi v48, v40 offset:128")
    A(f"v_mov_b32 v48, {L_G}\nds_write_b32 v48, v14 offset:8")
    A(f"v_mov_b32 v44, 0\nv_mov_b32 v45, 0\nv_mov_b32 v46, 0\nv_mov_b32 v47, 0\nds_write_b128 v48, v[44:47] offset:{L_ST-L_G}\nds_write_b128 v48, v[44:47] offset:{L_ST-L_G+16}")
    A("s_branch L_pa_done")
    A("L_ffn:")
    A(f"v_lshlrev_b32 v41, 16, v40\nv_and_b32 v42, 0xffff0000, v40\nv_mul_f32 v43, {LOG2E | 0x80000000}, v41\nv_exp_f32 v43, v43")
    A("v_add_f32 v43, 1.0, v43\nv_rcp_f32 v43, v43\nv_mul_f32 v43, v41, v43\nv_cvt_pk_bf16_f32 v43, v43, v43\nv_lshlrev_b32 v43, 16, v43")
    A("v_mul_f32 v43, v43, v42\nv_cvt_pk_bf16_f32 v43, v43, v43")
    A(f"v_lshlrev_b32 v48, 2, v0\nv_add_u32 v48, {L_H}, v48\nds_write_b32 v48, v43")
    A("L_pa_done:")
    def wo_setup():
        A("v_lshrrev_b32 v10, 4, v0\nv_mul_u32_u24 v1, 1280, v10\nv_and_b32 v3, 15, v0\nv_lshl_add_u32 v1, v3, 4, v1")
        A("s_lshl_b32 s62, s31, 2\ns_add_u32 s62, s62, s57\ns_mul_i32 s62, s62, 40960")
        A("s_add_u32 s32, s12, s62\ns_addc_u32 s33, s13, 0\ns_mov_b32 s34, 40960\ns_mov_b32 s35, 0x20000")
        for t in range(8): A(f"s_mov_b32 s{48+t}, {5120*t}")
    def wo_load(i):
        t, cb = divmod(i, 5)
        A(f"buffer_load_dwordx4 v[{56+4*i}:{59+4*i}], v1, s[32:35], s{48+t} offen offset:{256*cb} nt")
    wo_setup()
    masks()
    A("s_waitcnt lgkmcnt(0)")
    stamp(3)
    A("s_barrier")
    if prio: A("s_setprio 0")
    for i in range(40):
        if i >= DA2: A(f"s_waitcnt vmcnt({DA2-1})")
        wo_load(i)
    A("s_branch L_tail")

    A("L_aux67:")
    A("s_waitcnt lgkmcnt(0)")
    wo_setup()
    A("s_mul_i32 s62, s30, 1280\ns_add_u32 s60, s4, s62\ns_addc_u32 s61, s5, 0\nv_lshlrev_b32 v2, 2, v0")
    for i in range(5):
        A(f"global_load_dword v{216+i}, v2, s[60:61] offset:{256*i}\nglobal_load_dword v{224+i}, v2, s[22:23] offset:{256*i}")
    for i in range(DA): wo_load(i)
    masks()
    A("s_lshl_b32 s62, s31, 1\ns_add_u32 s62, s62, s57\ns_sub_u32 s62, s62, 2\ns_mul_i32 s62, s62, 40960")
    A("s_add_u32 s36, s20, s62\ns_addc_u32 s37, s21, 0\ns_mov_b32 s38, 40960\ns_mov_b32 s39, 0x20000")
    A(f"s_waitcnt vmcnt({DA})\nv_mov_b32 v40, 0")
    for i in range(5):
        A(f"v_lshlrev_b32 v41, 16, v{216+i}\nv_and_b32 v42, 0xffff0000, v{216+i}\nv_lshlrev_b32 v43, 16, v{224+i}\nv_and_b32 v44, 0xffff0000, v{224+i}")
        A("v_mul_f32 v41, v41, v43\nv_mul_f32 v42, v42, v44\nv_cvt_pk_bf16_f32 v41, v41, v42")
        A("v_lshlrev_b32 v42, 16, v41\nv_and_b32 v41, 0xffff0000, v41\nv_add_f32 v40, v40, v42\nv_add_f32 v40, v40, v41")
    xlane("v_add_f32", 40, 41)
    A(f"v_cvt_pk_bf16_f32 v40, v40, v40\nv_lshlrev_b32 v40, 16, v40\nv_mul_f32 v40, {LOG2E | 0x80000000}, v40\nv_exp_f32 v40, v40")
    A("v_add_f32 v40, 1.0, v40\nv_rcp_f32 v40, v40\nv_cvt_pk_bf16_f32 v40, v40, v40\nv_lshlrev_b32 v40, 16, v40")
    A("v_sub_f32 v41, 1.0, v40\nv_cvt_pk_bf16_f32 v41, v41, v41\nv_lshlrev_b32 v41, 16, v41")
    A(f"v_mov_b32 v48, {L_G}\nds_write_b64 v48, v[40:41]")
    for i in range(DA, WO_PRE):
        A(f"s_waitcnt vmcnt({DA-1})"); wo_load(i)
    for k in range(20): A(f"v_mov_b32 v{12+k}, 0")
    A("s_waitcnt lgkmcnt(0)")
    stamp(3)
    A("s_barrier")
    if prio: A("s_setprio 0")
    A("s_cmp_ge_u32 s31, 27\ns_cbranch_scc1 L_w2done")
    A(f"s_sub_u32 s62, s57, 2\ns_lshl_b32 s62, s62, 3\nv_xor_b32 v48, s62, v0\nv_lshlrev_b32 v48, 2, v48\nv_add_u32 v48, {L_H}, v48\nds_read_b32 v8, v48")
    RW = 216; NR = 10
    def w2_load(i):
        t, cb = divmod(i, 5); r = RW + 4 * (i % NR)
        A(f"buffer_load_dwordx4 v[{r}:{r+3}], v1, s[36:39], s{48+t} offen offset:{256*cb} nt")
    for i in range(DA):
        A(f"s_waitcnt vmcnt({DA-1})"); w2_load(i)
    A("s_waitcnt lgkmcnt(0)")
    for i in range(40):
        t, cb = divmod(i, 5); r = RW + 4 * (i % NR); a = 32 + 4 * (t & 1)
        if cb == 0: abuild(a, 8, t)
        A(f"s_waitcnt vmcnt({min(DA-1, 39-i)})")
        A(f"v_mfma_f32_16x16x32_bf16 v[{12+4*cb}:{15+4*cb}], v[{a}:{a+3}], v[{r}:{r+3}], v[{12+4*cb}:{15+4*cb}]")
        if i + DA < 40: w2_load(i + DA)
    A("s_nop 7")
    A("L_w2done:")
    for i in range(WO_PRE, WO_PRE + DA):
        if i < 40: wo_load(i)
    for k in range(20): A(f"v_mul_f32 v{12+k}, v{12+k}, v41")
    A(f"v_and_b32 v49, 15, v0\nv_lshlrev_b32 v49, 5, v49\nv_lshl_add_u32 v49, v10, 4, v49")
    A(f"s_sub_u32 s62, s57, 2\ns_mul_i32 s62, s62, 2560\ns_add_u32 s62, s62, {L_B}\nv_add_u32 v49, s62, v49")
    A("s_mov_b32 exec_hi, 0")
    for cb in range(5): A(f"ds_write_b128 v49, v[{12+4*cb}:{15+4*cb}] offset:{512*cb}")
    A("s_mov_b64 exec, -1")
    for i in range(WO_PRE + DA, 40):
        A(f"s_waitcnt vmcnt({DA-1})"); wo_load(i)

    A("L_tail:")
    A(f"v_mov_b32 v48, {L_G}\nds_read_b96 v[44:46], v48")
    A(f"v_and_b32 v2, 7, v0\nv_lshlrev_b32 v2, 4, v2\nv_lshl_add_u32 v2, v10, 2, v2\ns_lshl_b32 s62, s57, 7\ns_add_u32 s62, s62, {L_O}\nv_add_u32 v2, s62, v2")
    A(f"s_mul_i32 s62, s57, 640\nv_lshlrev_b32 v3, 4, v0\nv_add_u32 v3, s62, v3\nv_add_u32 v9, {L_B}, v3\nv_add_u32 v11, {L_R2}, v3")
    A(f"v_and_b32 v47, 15, v0\nv_lshlrev_b32 v47, 5, v47\nv_lshl_add_u32 v47, v10, 4, v47\ns_mul_i32 s62, s57, 2560\ns_add_u32 s62, s62, {L_R2}\nv_add_u32 v47, s62, v47")
    A(f"s_mul_i32 s62, s2, 2560\ns_add_u32 s62, s62, {HOP2}\ns_add_u32 s66, s28, s62\ns_addc_u32 s67, s29, 0")
    A(f"s_mul_i32 s62, s30, {32*2560}\ns_lshl_b32 s63, s31, 7\ns_add_u32 s62, s62, s63\ns_add_u32 s62, s62, {HOP2}\ns_add_u32 s68, s28, s62\ns_addc_u32 s69, s29, 0")
    for r in range(4): A(f"s_mov_b32 s{40+r}, {0x07060500 + r}")
    A("s_mov_b32 s44, 0x0c0c0400\ns_mov_b32 s45, 0x04000c0c")
    A("s_waitcnt vmcnt(0) lgkmcnt(0)")
    stamp(4)
    A("s_barrier")
    stamp(5)
    for w in range(4): A(f"ds_read_b32 v{40+w}, v2 offset:{512*w}")
    A("s_mov_b32 exec_hi, 0xff")
    A("ds_read_b128 v[216:219], v9\nds_read_b128 v[220:223], v9 offset:2560")
    A("s_mov_b64 exec, -1")
    A("s_waitcnt lgkmcnt(2)" if not stamps else "s_waitcnt lgkmcnt(0)")
    A("v_add_f32 v40, v40, v41\nv_add_f32 v42, v42, v43\nv_add_f32 v40, v40, v42\nv_cvt_pk_bf16_f32 v8, v40, v40")
    abuild(32, 8, 0)
    for t in range(8):
        a = 32 + 4 * (t & 1)
        for cb in range(5):
            r = 56 + 4 * (5 * t + cb)
            c = "0" if t == 0 else f"v[{12+4*cb}:{15+4*cb}]"
            A(f"v_mfma_f32_16x16x32_bf16 v[{12+4*cb}:{15+4*cb}], v[{a}:{a+3}], v[{r}:{r+3}], {c}")
            if cb == 0 and t < 7: abuild(32 + 4 * ((t + 1) & 1), 8, t + 1)
    A("s_waitcnt lgkmcnt(0)")
    for k in range(4): A(f"v_add_f32 v{216+k}, v{216+k}, v{220+k}")
    A("s_mov_b32 exec_hi, 0")
    for cb in range(5): A(f"ds_write_b128 v47, v[{12+4*cb}:{15+4*cb}] offset:{512*cb}")
    A("s_mov_b32 exec_hi, 0xff\ns_waitcnt lgkmcnt(0)\ns_barrier")
    for w in range(4): A(f"ds_read_b128 v[{12+4*w}:{15+4*w}], v11 offset:{2560*w}")
    A("s_waitcnt lgkmcnt(0)")
    for k in range(4): A(f"v_add_f32 v{12+k}, v{12+k}, v{16+k}\nv_add_f32 v{20+k}, v{20+k}, v{24+k}")
    for k in range(4): A(f"v_add_f32 v{12+k}, v{12+k}, v{20+k}")
    for k in range(4): A(f"v_fma_f32 v{12+k}, v{12+k}, v44, v{216+k}")
    for k in range(4): A(f"v_perm_b32 v{12+k}, v{12+k}, v46, s{40+k}")
    A("global_store_dwordx4 v3, v[12:15], s[66:67] sc1")
    A("s_mov_b64 exec, -1")
    stamp(6)
    A("s_cmp_lg_u32 s3, 4\ns_cbranch_scc1 L_fin\ns_cmp_ge_u32 s31, 20\ns_cbranch_scc1 L_fin")
    A("v_mov_b32 v14, v46\nv_lshrrev_b32 v2, 3, v0\nv_mul_u32_u24 v2, 2560, v2\nv_and_b32 v3, 7, v0\nv_lshl_add_u32 v2, v3, 4, v2")
    for k in range(1, 4): A(f"v_add_u32 v{51+k}, {20480*k}, v2")
    A("v_lshlrev_b32 v3, 3, v3\nv_lshl_add_u32 v3, v10, 1, v3\ns_mul_i32 s62, s30, 1280\ns_lshl_b32 s63, s31, 6\ns_add_u32 s62, s62, s63")
    A("s_add_u32 s60, s24, s62\ns_addc_u32 s61, s25, 0\ns_mov_b32 s46, 0x00ff00ff\ns_mov_b32 s47, 0x00ff00ff")
    A("s_mov_b32 s98, 0\nL_poll2:")
    A("global_load_dwordx4 v[16:19], v2, s[68:69] sc1")
    for k in range(1, 4): A(f"global_load_dwordx4 v[{16+4*k}:{19+4*k}], v{51+k}, s[68:69] sc1")
    A("s_waitcnt vmcnt(0)")
    tagcheck([16, 20, 24, 28], True)
    spin_back("L_poll2", 1 << 16)
    for r in range(16, 32): A(f"v_and_b32 v{r}, 0xffffff00, v{r}")
    for k in range(4): A(f"v_add_f32 v{16+k}, v{16+k}, v{20+k}\nv_add_f32 v{24+k}, v{24+k}, v{28+k}")
    for k in range(4): A(f"v_add_f32 v{16+k}, v{16+k}, v{24+k}")
    treduce(16)
    A("v_add_f32_dpp v16, v16, v16 row_ror:8 row_mask:0xf bank_mask:0xf")
    A("v_cvt_pk_bf16_f32 v16, v16, v16\ns_mov_b64 exec, s[46:47]\nglobal_store_short v3, v16, s[60:61]")
    A("s_cmp_lg_u32 s2, 0\ns_cbranch_scc1 L_fin")
    A("s_mov_b64 exec, 1\nv_mov_b32 v3, 0\nglobal_store_dword v3, v14, s[28:29]")
    A("L_fin:")
    stamp(7)
    if stamps:
        A("s_waitcnt vmcnt(0)\ns_memrealtime s[90:91]")
    dump_stamps()
    A("L_end:\ns_endpgm")
    A(kd(NAME + "_kernel", 256, 102, 256))
    text, nn = lint.fix("\n".join(o) + "\n")
    return text

if __name__ == "__main__":
    open("k1.s", "w").write(gen())
    open("k1_st.s", "w").write(gen(stamps=True))
```
